```python
import torch

def _softmax(x, axis=-1):
    return torch.softmax(x, dim=axis)

def _gelu(x):
    return torch.nn.functional.gelu(x, approximate='tanh')

def _silu(x):
    return torch.nn.functional.silu(x)

def _sigmoid(x):
    return torch.sigmoid(x)

def _layernorm(x, axis=-1, eps=1e-05):
    m = x.mean(dim=axis, keepdim=True)
    v = x.var(dim=axis, keepdim=True, unbiased=False)
    return (x - m) / torch.sqrt(v + eps)

def _scatter_add(tgt, idx, src, axis=0):
    return tgt.clone().index_add_(axis, idx, src)

def _segment_sum(src, seg, n):
    out = torch.zeros((n,) + src.shape[1:], dtype=src.dtype)
    return out.index_add_(0, seg, src)

def _pad(x, pw):
    flat = tuple((v for pair in reversed(pw) for v in pair))
    return torch.nn.functional.pad(x, flat)
kernel_name = 'adaLN_cond__sliding_local_dilated__glu_gated_glu__prompt'

def setup_inputs():

    _w = lambda a: (lambda t: t.to(torch.bfloat16) if t.is_floating_point() else t)(torch.as_tensor(a))

    def _A_setup():
        B, S, D = (1, 2048, 512)
        return {'x': _w((lambda *s: torch.randn(*s, dtype=torch.bfloat16) * 0.05)(B, S, D)), 'wqkv': _w((lambda *s: torch.randn(*s, dtype=torch.bfloat16) * 0.05)(D, 3 * D)), 'wo': _w((lambda *s: torch.randn(*s, dtype=torch.bfloat16) * 0.05)(D, D))}
    _A_in = _A_setup()

    def _B_setup():
        B, S, D, F = (1, 2048, 512, 1792)
        return {'x': _w((lambda *s: torch.randn(*s, dtype=torch.bfloat16) * 0.05)(B, S, D)), 'w_gate': _w((lambda *s: torch.randn(*s, dtype=torch.bfloat16) * 0.05)(D, F)), 'w_up': _w((lambda *s: torch.randn(*s, dtype=torch.bfloat16) * 0.05)(D, F)), 'w_down': _w((lambda *s: torch.randn(*s, dtype=torch.bfloat16) * 0.05)(F, D))}
    _B_in = _B_setup()
    return {'A_x': _A_in['x'], 'A_wqkv': _A_in['wqkv'], 'A_wo': _A_in['wo'], 'B_x': _B_in['x'], 'B_w_gate': _B_in['w_gate'], 'B_w_up': _B_in['w_up'], 'B_w_down': _B_in['w_down'], 'c': _w((lambda *s: torch.randn(*s, dtype=torch.bfloat16) * 0.1)(1, 512) * 8.0), 'w_mod': _w((lambda *s: torch.randn(*s, dtype=torch.bfloat16) * 0.1)(512, 6 * 512) * 512 ** (-0.5) * 8.0)}

def reference(A_x, A_wqkv, A_wo, B_x, B_w_gate, B_w_up, B_w_down, c, w_mod):

    def _A_ref(x, wqkv, wo):
        B, S, D = x.shape
        H = 32
        Dh = D // H
        W, dil = (8, 2)
        qkv = (lambda x, *d: x.permute(*d))((x @ wqkv).reshape(B, S, 3, H, Dh), 2, 0, 3, 1, 4)
        q, k, v = (qkv[0], qkv[1], qkv[2])
        scale = Dh ** (-0.5)
        pos = torch.arange(S)
        off = torch.arange(W) * dil
        idx = pos[:, None] - off[None, :]
        mask = idx >= 0
        idx_c = torch.where(mask, idx, 0).reshape(-1)
        kg = k[:, :, idx_c, :].reshape(B, H, S, W, Dh)
        vg = v[:, :, idx_c, :].reshape(B, H, S, W, Dh)
        logits = torch.einsum('bhsd,bhswd->bhsw', q, kg) * scale
        logits = torch.where(mask[None, None, :, :], logits, -1000000000.0)
        attn = _softmax(logits, axis=-1)
        o = torch.einsum('bhsw,bhswd->bhsd', attn, vg)
        return (lambda x, *d: x.permute(*d))(o, 0, 2, 1, 3).reshape(B, S, D) @ wo

    def _B_ref(x, w_gate, w_up, w_down):
        g = torch.einsum('bsd,df->bsf', x, w_gate)
        u = torch.einsum('bsd,df->bsf', x, w_up)
        h = _sigmoid(g) * u
        return torch.einsum('bsf,fd->bsd', h, w_down)
    x = A_x
    mod = (_silu(c) @ w_mod).reshape(c.shape[0], 6, 1, -1)
    sa, ca, ga, sb, cb, gb = (mod[:, 0].clone(), mod[:, 1].clone(), mod[:, 2].clone(), mod[:, 3].clone(), mod[:, 4].clone(), mod[:, 5].clone())
    h = _layernorm(x, axis=-1) * (1 + ca) + sa
    x = x + ga * _A_ref(h, A_wqkv, A_wo)
    h = _layernorm(x, axis=-1) * (1 + cb) + sb
    x = x + gb * _B_ref(h, B_w_gate, B_w_up, B_w_down)
    return x
```

```python
import re

REG_RE = re.compile(r'^(-|\|)?([vas])(\d+)\|?$')
REGR_RE = re.compile(r'^(-)?([vas])\[(\d+):(\d+)\]$')


def v(i, n=1):
    return f"v{i}" if n == 1 else f"v[{i}:{i+n-1}]"


def a(i, n=1):
    return f"a{i}" if n == 1 else f"a[{i}:{i+n-1}]"


def s(i, n=1):
    return f"s{i}" if n == 1 else f"s[{i}:{i+n-1}]"


def regs_of(op):
    op = op.strip()
    if op.startswith('abs(') and op.endswith(')'):
        op = op[4:-1]
    if op.startswith('-abs(') and op.endswith(')'):
        op = op[5:-1]
    m = REG_RE.match(op)
    if m:
        return [(m.group(2), int(m.group(3)))]
    m = REGR_RE.match(op)
    if m:
        return [(m.group(2), i) for i in range(int(m.group(3)), int(m.group(4)) + 1)]
    if op == 'vcc':
        return [('s', 'vcc_lo'), ('s', 'vcc_hi')]
    if op in ('vcc_lo', 'vcc_hi', 'm0'):
        return [('s', op)]
    if op == 'exec':
        return [('s', 'exec_lo'), ('s', 'exec_hi')]
    if op in ('exec_lo', 'exec_hi'):
        return [('s', op)]
    return []


TRANS = ('v_exp_f32', 'v_log_f32', 'v_rcp_f32', 'v_rsq_f32', 'v_sqrt_f32', 'v_sin_f32', 'v_cos_f32', 'v_rcp_iflag_f32')
MFMA_PASSES = {
    'v_mfma_f32_32x32x16_bf16': 8,
    'v_mfma_f32_16x16x32_bf16': 4,
    'v_mfma_f32_16x16x16_bf16': 4,
    'v_mfma_f32_32x32x8_bf16': 8,
}


class Instr:
    __slots__ = ('text', 'mn', 'ops', 'mods', 'cls', 'defs', 'uses', 'tag', 'pre_wait_vm', 'pre_wait_lgkm', 'pre_nop',
                 'srcA', 'srcB', 'srcC', 'passes', 'comment', 'is_dpp', 'nocheck')

    def __init__(self, text, tag=None, comment=None, nocheck=False):
        self.text = text.strip()
        self.tag = tag
        self.comment = comment
        self.nocheck = nocheck
        self.pre_wait_vm = None
        self.pre_wait_lgkm = None
        self.pre_nop = 0
        self.parse()

    def parse(self):
        t = self.text
        parts = t.split(None, 1)
        mn = parts[0]
        for suf in ('_e32', '_e64', '_dpp', '_sdwa'):
            if mn.endswith(suf):
                mn = mn[:-len(suf)]
        self.mn = mn
        rest = parts[1] if len(parts) > 1 else ''
        ops, cur, depth = [], '', 0
        for ch in rest:
            if ch in '[(':
                depth += 1
            if ch in '])':
                depth -= 1
            if ch == ',' and depth == 0:
                ops.append(cur.strip())
                cur = ''
            else:
                cur += ch
        if cur.strip():
            ops.append(cur.strip())
        mods = []
        if ops:
            last = ops[-1].split()
            ops[-1] = last[0]
            mods = last[1:]
        self.ops = ops
        self.mods = mods
        self.is_dpp = any(m.startswith(('row_', 'quad_perm', 'wave_')) for m in mods)
        R = regs_of
        defs, uses = [], []
        self.srcA = self.srcB = self.srcC = None
        self.passes = 0
        if mn.startswith('v_mfma'):
            cls = 'mfma'
            self.passes = MFMA_PASSES[mn]
            defs = R(ops[0])
            self.srcA, self.srcB, self.srcC = R(ops[1]), R(ops[2]), R(ops[3])
            uses = self.srcA + self.srcB + self.srcC
        elif mn.startswith('v_'):
            cls = 'valu'
            if mn.startswith('v_cmp'):
                defs = R(ops[0])
                for o in ops[1:]:
                    uses += R(o)
            elif mn in ('v_permlane32_swap_b32', 'v_permlane16_swap_b32'):
                defs = R(ops[0]) + R(ops[1])
                uses = list(defs)
            elif mn in ('v_add_co_u32', 'v_sub_co_u32', 'v_addc_co_u32', 'v_subb_co_u32'):
                defs = R(ops[0]) + R(ops[1])
                for o in ops[2:]:
                    uses += R(o)
            elif mn == 'v_nop':
                pass
            else:
                defs = R(ops[0])
                for o in ops[1:]:
                    uses += R(o)
                if mn.startswith(('v_fmac', 'v_dot2c', 'v_mac', 'v_pk_fmac', 'v_writelane')) or self.is_dpp and False:
                    uses += R(ops[0])
                if mn == 'v_cndmask_b32' and len(ops) == 3:
                    uses += R('vcc')
                if self.is_dpp:
                    uses += R(ops[0])
        elif mn.startswith('ds_'):
            cls = 'ds'
            if mn.startswith(('ds_read', 'ds_bpermute', 'ds_permute', 'ds_swizzle')):
                defs = R(ops[0])
                for o in ops[1:]:
                    uses += R(o)
            else:
                for o in ops:
                    uses += R(o)
        elif mn.startswith('buffer_'):
            cls = 'vmem'
            if mn.startswith('buffer_load'):
                if 'lds' in mods:
                    for o in ops:
                        uses += R(o)
                    uses += R('m0')
                else:
                    defs = R(ops[0])
                    for o in ops[1:]:
                        uses += R(o)
            elif mn.startswith('buffer_atomic'):
                for o in ops:
                    uses += R(o)
                if 'sc0' in mods:
                    defs = R(ops[0])
            elif mn.startswith('buffer_store'):
                for o in ops:
                    uses += R(o)
            else:
                pass
        elif mn.startswith('global_'):
            cls = 'vmem'
            if mn.startswith('global_load_lds'):
                for o in ops:
                    uses += R(o)
                uses += R('m0')
            elif mn.startswith('global_load'):
                defs = R(ops[0])
                for o in ops[1:]:
                    uses += R(o)
            elif mn.startswith('global_atomic'):
                if 'sc0' in mods:
                    defs = R(ops[0])
                    for o in ops[1:]:
                        uses += R(o)
                else:
                    for o in ops:
                        uses += R(o)
            else:
                for o in ops:
                    uses += R(o)
        elif mn.startswith(('s_load', 's_memtime', 's_memrealtime')):
            cls = 'smem'
            defs = R(ops[0])
            for o in ops[1:]:
                uses += R(o)
        elif mn.startswith('s_'):
            cls = 'salu'
            if mn.startswith(('s_cmp', 's_bitcmp')):
                for o in ops:
                    uses += R(o)
            elif mn in ('s_waitcnt', 's_barrier', 's_nop', 's_setprio', 's_sleep', 's_endpgm', 's_branch') or mn.startswith('s_cbranch'):
                if mn in ('s_cbranch_vccz', 's_cbranch_vccnz'):
                    uses = R('vcc')
            elif mn.endswith('saveexec_b64'):
                defs = R(ops[0]) + R('exec')
                uses = R(ops[1]) + R('exec')
            elif mn == 's_getreg_b32':
                defs = R(ops[0])
            else:
                defs = R(ops[0])
                for o in ops[1:]:
                    uses += R(o)
                if mn in ('s_addk_i32', 's_mulk_i32', 's_cmov_b32', 's_cmov_b64'):
                    uses += R(ops[0])
        else:
            raise ValueError('unknown instr ' + t)
        self.cls = cls
        self.defs = defs
        self.uses = uses


class Label:
    def __init__(self, name):
        self.name = name


class Raw:
    def __init__(self, text):
        self.text = text


class WaitTag:
    def __init__(self, tag):
        self.tag = tag
        self.n = None


class Loop:
    def __init__(self, name, count, creg, body):
        self.name, self.count, self.creg, self.body = name, count, creg, body


class Spin:
    def __init__(self, body, drains=False):
        self.body, self.drains = body, drains


def resolve(tag, env):
    return tag(env) if callable(tag) else tag


class Prog:
    def __init__(self):
        self.items = []
        self.stack = [self.items]
        self.uid = 0

    def e(self, text, tag=None, comment=None, nocheck=False):
        for line in text.strip().split('\n'):
            line = line.split(';')[0].strip()
            if not line:
                continue
            if line.endswith(':'):
                self.stack[-1].append(Label(line[:-1]))
            else:
                self.stack[-1].append(Instr(line, tag=tag, comment=comment, nocheck=nocheck))

    def raw(self, text):
        self.stack[-1].append(Raw(text))

    def cmt(self, text):
        self.stack[-1].append(Raw('; ' + text))

    def label(self, name):
        self.stack[-1].append(Label(name))

    def newlabel(self, base):
        self.uid += 1
        return f"L_{base}_{self.uid}"

    def wait_tag(self, tag):
        self.stack[-1].append(WaitTag(tag))

    def loop(self, name, count, creg, body_fn):
        body = []
        self.stack.append(body)
        body_fn()
        self.stack.pop()
        self.stack[-1].append(Loop(name, count, creg, body))

    def spin(self, body_fn, drains=False):
        body = []
        self.stack.append(body)
        body_fn()
        self.stack.pop()
        self.stack[-1].append(Spin(body, drains))

    def analyze(self, items=None):
        items = self.items if items is None else items
        for it in range(12):
            st = SimState()
            changed = st.run(items, {})
            if not changed:
                return
        raise RuntimeError('analysis did not converge')

    def text(self):
        out = []
        self._emit(self.items, out)
        return '\n'.join(out) + '\n'

    def _emit_pre(self, ins, out):
        vm, lg = ins.pre_wait_vm, ins.pre_wait_lgkm
        if vm is not None or lg is not None:
            w = []
            if vm is not None:
                w.append(f'vmcnt({vm})')
            if lg is not None:
                w.append(f'lgkmcnt({lg})')
            out.append('    s_waitcnt ' + ' '.join(w))
        n = ins.pre_nop
        while n > 0:
            k = min(n, 16)
            out.append(f'    s_nop {k-1}')
            n -= k

    def _emit(self, items, out):
        for it in items:
            if isinstance(it, Instr):
                self._emit_pre(it, out)
                if it.comment:
                    out.append(f'    {it.text}  ; {it.comment}')
                else:
                    out.append('    ' + it.text)
            elif isinstance(it, Label):
                out.append(it.name + ':')
            elif isinstance(it, Raw):
                out.append(it.text)
            elif isinstance(it, WaitTag):
                if it.n is not None:
                    out.append(f'    s_waitcnt vmcnt({it.n})')
            elif isinstance(it, Loop):
                lab = 'L_loop_' + it.name
                out.append(f'    s_mov_b32 s{it.creg}, 0')
                out.append(lab + ':')
                self._emit(it.body, out)
                out.append(f'    s_add_u32 s{it.creg}, s{it.creg}, 1')
                out.append(f'    s_cmp_lt_u32 s{it.creg}, {it.count}')
                out.append(f'    s_cbranch_scc1 {lab}')
            elif isinstance(it, Spin):
                self._emit(it.body, out)


def mfma_valu_gap(p):
    return {2: 5, 4: 8, 8: 12, 16: 20}[p]


def mfma_c_overlap_gap(p):
    return {2: 4, 4: 6, 8: 10, 16: 18}[p]


def mfma_war_c_gap(p):
    return {2: 1, 4: 3, 8: 7, 16: 15}[p]


class SimState:
    def __init__(self):
        self.pos = 0
        self.vm = []
        self.lg = []
        self.valu_w = {}
        self.mfma_w = {}
        self.mfma_c = {}
        self.valu_sw = {}
        self.m0_w = -100
        self.store_d = {}
        self.changed = False

    def adv(self, n=1):
        self.pos += n

    def wait_vm(self, n):
        if len(self.vm) > n:
            self.vm = self.vm[len(self.vm) - n:] if n > 0 else []

    def wait_lg(self, n):
        if n == 0:
            self.lg = []
        else:
            if any(x[1] for x in self.lg):
                return
            if len(self.lg) > n:
                self.lg = self.lg[len(self.lg) - n:]

    def run(self, items, env):
        for it in items:
            if isinstance(it, Instr):
                self.step(it, env)
            elif isinstance(it, WaitTag):
                tag = resolve(it.tag, env)
                need = None
                for i, (d, t) in enumerate(self.vm):
                    if t == tag:
                        need = len(self.vm) - 1 - i
                if need is not None:
                    need = min(need, 63)
                    if it.n is None or need < it.n:
                        it.n = need
                        self.changed = True
                if it.n is not None:
                    self.wait_vm(it.n)
                    self.adv()
            elif isinstance(it, Loop):
                self.adv()
                for i in range(it.count):
                    e2 = dict(env)
                    e2[it.name] = i
                    self.run(it.body, e2)
                    self.adv(3)
            elif isinstance(it, Spin):
                vm_save, lg_save = list(self.vm), list(self.lg)
                self.run(it.body, env)
                if it.drains:
                    self.vm, self.lg = [], []
                else:
                    self.vm, self.lg = vm_save, lg_save
        return self.changed

    def step(self, ins, env):
        mn = ins.mn
        regs = set(ins.defs) | set(ins.uses)
        if mn == 's_waitcnt':
            m = re.search(r'vmcnt\((\d+)\)', ins.text)
            if m:
                self.wait_vm(int(m.group(1)))
            m = re.search(r'lgkmcnt\((\d+)\)', ins.text)
            if m:
                self.wait_lg(int(m.group(1)))
            self.adv()
            return
        if mn == 's_nop':
            self.adv(int(ins.ops[0]) + 1)
            return
        if not ins.nocheck:
            need = None
            for i, (d, t) in enumerate(self.vm):
                if d & regs:
                    need = len(self.vm) - 1 - i
            if need is not None:
                need = min(need, 63)
                if ins.pre_wait_vm is None or need < ins.pre_wait_vm:
                    ins.pre_wait_vm = need
                    self.changed = True
            need = None
            smem_inflight = any(x[1] for x in self.lg)
            for i, (d, is_s, w) in enumerate(self.lg):
                if d & regs:
                    need = 0 if smem_inflight else len(self.lg) - 1 - i
            if need is not None:
                need = min(need, 15)
                if ins.pre_wait_lgkm is None or need < ins.pre_wait_lgkm:
                    ins.pre_wait_lgkm = need
                    self.changed = True
        if ins.pre_wait_vm is not None:
            self.wait_vm(ins.pre_wait_vm)
        if ins.pre_wait_lgkm is not None:
            self.wait_lg(ins.pre_wait_lgkm)
        if ins.pre_wait_vm is not None or ins.pre_wait_lgkm is not None:
            self.adv()
        req = 0

        def after(p, gap):
            nonlocal req
            req = max(req, p + 1 + gap)

        cls = ins.cls
        if cls == 'mfma':
            for r in ins.srcA + ins.srcB + ins.srcC:
                if r in self.valu_w:
                    after(self.valu_w[r][0], 2)
            for r in ins.srcA + ins.srcB:
                if r in self.mfma_w:
                    after(self.mfma_w[r][0], mfma_valu_gap(self.mfma_w[r][1]))
            crange = tuple(ins.srcC)
            for r in set(ins.srcC) | set(ins.defs):
                if r in self.mfma_w:
                    p, ps, rng = self.mfma_w[r]
                    if rng == crange and ps == ins.passes and crange == tuple(ins.defs):
                        continue
                    after(p, mfma_c_overlap_gap(ps) if r in ins.srcC else mfma_valu_gap(ps))
        elif cls == 'valu':
            istrans = mn in TRANS
            perm = mn.startswith('v_permlane')
            for r in regs:
                if r in self.mfma_w:
                    after(self.mfma_w[r][0], mfma_valu_gap(self.mfma_w[r][1]))
            for r in ins.defs:
                if r in self.mfma_c:
                    after(self.mfma_c[r][0], mfma_war_c_gap(self.mfma_c[r][1]))
                if r in self.store_d:
                    after(self.store_d[r], 2)
            for r in ins.uses:
                if r in self.valu_w:
                    p, tr = self.valu_w[r]
                    if tr and not istrans:
                        after(p, 1)
                    if tr and istrans:
                        after(p, 1)
                    if perm or ins.is_dpp:
                        after(p, 2)
                    if mn in ('v_readlane_b32', 'v_readfirstlane_b32'):
                        after(p, 1)
                if r[0] == 's' and r in self.valu_sw:
                    after(self.valu_sw[r], 4 if mn in ('v_readlane_b32', 'v_writelane_b32') else 2)
        elif cls in ('vmem', 'ds'):
            for r in regs:
                if r in self.mfma_w:
                    after(self.mfma_w[r][0], mfma_valu_gap(self.mfma_w[r][1]))
                if r[0] == 's' and r in self.valu_sw:
                    after(self.valu_sw[r], 5)
            for r in ins.defs:
                if r in self.store_d:
                    after(self.store_d[r], 2)
            if ('s', 'm0') in ins.uses:
                after(self.m0_w, 1)
        elif cls == 'smem':
            for r in ins.uses:
                if r in self.valu_sw:
                    after(self.valu_sw[r], 5)
        elif cls == 'salu':
            for r in ins.uses:
                if r in self.valu_sw:
                    after(self.valu_sw[r], 1)
        cur = self.pos + ins.pre_nop
        if req > cur:
            ins.pre_nop += req - cur
            self.changed = True
        self.pos += ins.pre_nop
        p = self.pos
        if cls == 'mfma':
            rng = tuple(ins.defs)
            for r in ins.defs:
                self.mfma_w[r] = (p, ins.passes, rng)
                self.valu_w.pop(r, None)
            for r in ins.srcC:
                self.mfma_c[r] = (p, ins.passes)
        elif cls == 'valu':
            tr = mn in TRANS
            for r in ins.defs:
                if r[0] == 's':
                    self.valu_sw[r] = p
                else:
                    self.valu_w[r] = (p, tr)
                    self.mfma_w.pop(r, None)
        elif cls == 'salu':
            for r in ins.defs:
                self.valu_sw.pop(r, None)
                if r == ('s', 'm0'):
                    self.m0_w = p
        elif cls == 'vmem':
            dest = set(ins.defs)
            self.vm.append((dest, resolve(ins.tag, env)))
            if len(self.vm) > 63:
                self.vm = self.vm[-63:]
            if mn.endswith(('x4', 'x3')) and 'store' in mn:
                for r in ins.uses:
                    if r[0] in 'va':
                        self.store_d[r] = p
            for r in ins.defs:
                self.mfma_w.pop(r, None)
                self.valu_w.pop(r, None)
        elif cls == 'ds':
            self.lg.append((set(ins.defs), False, 1))
            for r in ins.defs:
                self.mfma_w.pop(r, None)
                self.valu_w.pop(r, None)
        elif cls == 'smem':
            self.lg.append((set(ins.defs), True, 2))
        self.adv()
```

```python
import numpy as np

WS_FLAGS = 0x0
WS_MOD = 0x10000
WS_STAMP = 0x20000
WS_O = 0x100000
WS_X1 = 0x300000
WS_STATS = 0x500000
WS_HH = 0x600000
WS_USED = 0xD00000


def unfrag(flat, K):
    nks = K // 16
    f = flat.reshape(64, nks, 2, 32, 8)
    out = np.zeros((2048, K), np.float32)
    r = np.arange(32)
    rows = 2 * (r & 15) + (r >> 4)
    for h in range(2):
        for j in range(8):
            k = 4 * h + j if j < 4 else 8 + 4 * h + j - 4
            for T in range(64):
                out[32 * T + rows, k::16] = f[T, :, h, :, j].T
    return out
```

```python
from asmlib import *
import layout as LY

P_X, P_WQKV, P_WO, P_BX, P_WG, P_WU, P_WD, P_C, P_WMOD, P_OUT, P_DBG, P_WS = [36 + 2 * i for i in range(12)]
S_W = 3
LOG2E = 1.4426950408889634


def f2u(x):
    import struct
    return struct.unpack('<I', struct.pack('<f', x))[0]


def hexf(x):
    return hex(f2u(x))


def prologue(p, nwg, endlab):
    p.e(f's_cmp_ge_u32 s2, {nwg}')
    p.e(f's_cbranch_scc1 {endlab}')
    p.e('s_load_dwordx16 s[36:51], s[0:1], 0')
    p.e('s_load_dwordx8 s[52:59], s[0:1], 64')
    p.e('v_lshrrev_b32 v1, 6, v0')
    p.e(f'v_readfirstlane_b32 s{S_W}, v1')
    p.e('v_and_b32 v0, 63, v0')
    p.e('s_waitcnt lgkmcnt(0)')


def srd(p, d, ptr, size):
    p.e(f's_mov_b32 s{d}, s{ptr}')
    p.e(f's_mov_b32 s{d+1}, s{ptr+1}')
    p.e(f's_mov_b32 s{d+2}, {hex(size)}')
    p.e(f's_mov_b32 s{d+3}, 0x20000')


def phase_mod(p, endlab, zero_flags=True):
    SC, SW, SS = 8, 12, 16
    srd(p, SC, P_C, 1024)
    srd(p, SW, P_WMOD, 512 * 3072 * 2)
    srd(p, SS, P_WS, LY.WS_USED)
    p.e(f's_lshl_b32 s20, s{S_W}, 6')
    p.e('v_add_u32 v1, s20, v0')
    p.e('v_lshrrev_b32 v2, 2, v1')
    p.e('v_and_b32 v3, 3, v1')
    p.e('v_lshlrev_b32 v4, 4, v2')
    p.e(f'buffer_load_dwordx4 v[8:11], v4, s[{SC}:{SC+3}], 0 offen')
    p.e('v_mul_u32_u24 v5, 0xc000, v2')
    p.e('v_lshl_add_u32 v5, v3, 4, v5')
    p.e('s_lshl_b32 s21, s2, 6')
    for j in range(8):
        p.e(f'buffer_load_dwordx4 v[{16+4*j}:{19+4*j}], v5, s[{SW}:{SW+3}], s21 offen')
        if j < 7:
            p.e('s_add_u32 s21, s21, 6144')
    if zero_flags:
        lab = p.newlabel('nozero')
        p.e('s_cmp_lg_u32 s2, 0')
        p.e(f's_cbranch_scc1 {lab}')
        p.e(f's_cmp_lg_u32 s{S_W}, 1')
        p.e(f's_cbranch_scc1 {lab}')

        def z():
            p.e('v_lshlrev_b32 v6, 8, v0')
            p.e('v_mov_b32 v7, 0')
            p.e(f'buffer_store_dword v7, v6, s[{SS}:{SS+3}], 0 offen sc1')
            p.e(f'buffer_store_dword v7, v6, s[{SS}:{SS+3}], 0 offen offset:128 sc1')
            p.e('s_waitcnt vmcnt(0)')
        p.spin(z)
        p.label(lab)
    p.e('s_mov_b32 s7, 0xffff0000')
    for i in range(4):
        p.e(f'v_lshlrev_b32 v{48+2*i}, 16, v{8+i}')
        p.e(f'v_and_b32 v{49+2*i}, s7, v{8+i}')
    for i in range(8):
        p.e(f'v_mul_f32 v{56+i}, {hexf(-LOG2E)}, v{48+i}')
    for i in range(8):
        p.e(f'v_exp_f32 v{56+i}, v{56+i}')
    for i in range(8):
        p.e(f'v_add_f32 v{56+i}, 1.0, v{56+i}')
    for i in range(8):
        p.e(f'v_rcp_f32 v{56+i}, v{56+i}')
    for i in range(8):
        p.e(f'v_mul_f32 v{56+i}, v{48+i}, v{56+i}')
    for i in range(4):
        p.e(f'v_cvt_pk_bf16_f32 v{8+i}, v{56+2*i}, v{57+2*i}')
    for i in range(4):
        p.e(f'v_lshlrev_b32 v{48+2*i}, 16, v{8+i}')
        p.e(f'v_and_b32 v{49+2*i}, s7, v{8+i}')
    for j in range(8):
        for i in range(4):
            p.e(f'v_lshlrev_b32 v{64+2*i}, 16, v{16+4*j+i}')
            p.e(f'v_and_b32 v{65+2*i}, s7, v{16+4*j+i}')
        for i in range(8):
            if j == 0:
                p.e(f'v_mul_f32 v{56+i}, v48, v{64+i}')
            else:
                p.e(f'v_fmac_f32 v{56+i}, v{48+j}, v{64+i}')
    p.e('v_lshlrev_b32 v6, 7, v2')
    p.e('v_lshl_add_u32 v6, v3, 5, v6')
    p.e('ds_write_b128 v6, v[56:59]')
    p.e('ds_write_b128 v6, v[60:63] offset:16')
    p.e('s_waitcnt lgkmcnt(0)')
    p.e('s_barrier')
    p.e(f's_cmp_lg_u32 s{S_W}, 0')
    p.e(f's_cbranch_scc1 {endlab}')
    p.e('v_and_b32 v2, 31, v0')
    p.e('v_lshrrev_b32 v3, 5, v0')
    p.e('v_lshlrev_b32 v3, 12, v3')
    p.e('v_lshl_add_u32 v3, v2, 2, v3')
    for r in range(32):
        p.e(f'ds_read_b32 v{16+r}, v3 offset:{128*r}')
    n = 32
    while n > 1:
        n //= 2
        for r in range(n):
            p.e(f'v_add_f32 v{16+r}, v{16+r}, v{16+n+r}')
    p.e('v_mov_b32 v17, v16')
    p.e('v_permlane32_swap_b32 v17, v16')
    p.e('v_add_f32 v16, v16, v17')
    p.e('v_cvt_pk_bf16_f32 v16, v16, v16')
    p.e('v_lshlrev_b32 v16, 16, v16')
    p.e('s_lshr_b32 s20, s2, 4')
    p.e('v_add_f32 v17, 1.0, v16')
    p.e('v_cvt_pk_bf16_f32 v17, v17, v17')
    p.e('v_lshlrev_b32 v17, 16, v17')
    p.e('s_cmp_eq_u32 s20, 1')
    p.e('s_cselect_b32 s21, 1, 0')
    p.e('s_cmp_eq_u32 s20, 4')
    p.e('s_cselect_b32 s21, 1, s21')
    p.e('s_cmp_eq_u32 s21, 1')
    p.e('s_cselect_b64 vcc, -1, 0')
    p.e('v_cndmask_b32 v16, v16, v17, vcc')
    p.e('s_lshl_b32 s20, s2, 7')
    p.e(f's_add_u32 s20, s20, {LY.WS_MOD}')
    p.e('v_lshlrev_b32 v2, 2, v2')
    p.e(f'buffer_store_dword v16, v2, s[{SS}:{SS+3}], s20 offen sc1')


B_R2 = 81920
S_RB, S_HG = 4, 5
SX, SWS, SW1, SOUT = 8, 12, 16, 20


def ids_rb(p):
    p.e('s_and_b32 s6, s2, 7')
    p.e('s_lshr_b32 s7, s2, 3')
    p.e('s_and_b32 s4, s7, 3')
    p.e('s_lshl_b32 s6, s6, 2')
    p.e('s_add_u32 s4, s4, s6')
    p.e('s_lshr_b32 s5, s7, 2')


def phase_B(p):
    XB = 16
    VC, VS = 176, 184
    VSUM, VSQ = 192, 212
    T = 232
    srd(p, SX, P_X, 2048 * 1024)
    srd(p, SWS, P_WS, LY.WS_USED)
    srd(p, SW1, P_WQKV, 512 * 3072)
    ids_rb(p)
    p.e('s_mov_b32 s7, 0xffff0000')
    p.e('v_lshlrev_b32 v1, 4, v0')
    p.e(f's_lshl_b32 s20, s{S_RB}, 6')
    p.e(f's_lshr_b32 s21, s{S_W}, 1')
    p.e(f's_and_b32 s22, s{S_W}, 1')
    p.e('s_lshl_b32 s24, s21, 5')
    p.e('s_add_u32 s24, s24, s22')
    p.e('s_add_u32 s24, s24, s20')
    p.e('s_lshl_b32 s24, s24, 10')
    for r in range(16):
        b = XB + 8 * r + 4
        p.e(f'buffer_load_dwordx4 v[{b}:{b+3}], v1, s[{SX}:{SX+3}], s24 offen')
        if r < 15:
            p.e('s_add_u32 s24, s24, 2048')
    p.e('s_lshl_b32 s25, s22, 3')
    p.e('s_add_u32 s25, s25, s21')
    p.e('s_add_u32 s25, s25, s20')
    p.e('s_sub_u32 s25, s25, 16')
    for r in range(4):
        b = XB + 8 * (16 + r) + 4
        p.e('s_max_i32 s24, s25, 0')
        p.e('s_lshl_b32 s24, s24, 10')
        p.e(f'buffer_load_dwordx4 v[{b}:{b+3}], v1, s[{SX}:{SX+3}], s24 offen')
        if r < 3:
            p.e('s_add_u32 s25, s25, 2')
    p.e('v_lshlrev_b32 v2, 5, v0')
    p.e(f's_mov_b32 s24, {LY.WS_MOD}')
    p.e(f's_mov_b32 s25, {LY.WS_MOD + 2048}')
    p.e(f'buffer_load_dwordx4 v[{VS}:{VS+3}], v2, s[{SWS}:{SWS+3}], s24 offen sc1')
    p.e(f'buffer_load_dwordx4 v[{VS+4}:{VS+7}], v2, s[{SWS}:{SWS+3}], s24 offen offset:16 sc1')
    p.e(f'buffer_load_dwordx4 v[{VC}:{VC+3}], v2, s[{SWS}:{SWS+3}], s25 offen sc1')
    p.e(f'buffer_load_dwordx4 v[{VC+4}:{VC+7}], v2, s[{SWS}:{SWS+3}], s25 offen offset:16 sc1')
    p.e('v_lshrrev_b32 v5, 3, v0')
    p.e('v_and_b32 v6, 7, v0')
    p.e('v_bfe_u32 v7, v0, 4, 1')
    p.e('v_lshlrev_b32 v7, 1, v7')
    p.e('v_xor_b32 v6, v6, v7')
    p.e('v_mul_u32_u24 v5, 3072, v5')
    p.e('v_lshl_add_u32 v3, v6, 4, v5')
    p.e('v_xor_b32 v6, 4, v6')
    p.e('v_lshl_add_u32 v4, v6, 4, v5')
    p.e(f's_mul_i32 s26, s{S_W}, {16 * 3072}')
    p.e(f's_lshl_b32 s27, s{S_HG}, 7')
    p.e('s_add_u32 s26, s26, s27')
    p.e(f's_lshl_b32 s27, s{S_W}, 11')
    p.e(f's_add_u32 s27, s27, {B_R2}')

    def dma_chunk(c):
        slot = c % 3
        for part in range(3):
            for mm in range(2):
                p.e(f's_add_u32 s28, s26, {c * 64 * 3072 + part * 1024 + mm * 8 * 3072}')
                p.e(f's_add_u32 m0, s27, {slot * 24576 + part * 8192 + mm * 1024}')
                p.e(f'buffer_load_dwordx4 v{3+mm}, s[{SW1}:{SW1+3}], s28 offen lds', tag=('BW', c))

    dma_chunk(0)
    dma_chunk(1)
    p.e('v_lshrrev_b32 v7, 4, v0')
    p.e('v_bfe_u32 v8, v0, 2, 2')
    p.e('v_and_b32 v9, 3, v0')
    p.e('v_lshl_add_u32 v10, v7, 3, v8')
    p.e('v_lshlrev_b32 v10, 7, v10')
    p.e('v_lshrrev_b32 v11, 1, v9')
    p.e(f's_lshl_b32 s28, s{S_W}, 1')
    p.e('v_add_u32 v11, s28, v11')
    p.e('v_bfe_u32 v12, v8, 1, 1')
    p.e('v_and_b32 v13, 1, v7')
    p.e('v_lshl_or_b32 v12, v13, 1, v12')
    p.e('v_lshlrev_b32 v12, 1, v12')
    p.e('v_xor_b32 v11, v11, v12')
    p.e('v_lshl_add_u32 v10, v11, 4, v10')
    p.e('v_and_b32 v9, 1, v9')
    p.e('v_lshl_add_u32 v10, v9, 3, v10')
    p.e(f'v_add_u32 v5, {B_R2}, v10')
    p.e(f'v_add_u32 v6, {B_R2 + 49152}, v10')

    for r in range(20):
        b = XB + 8 * r
        for i in range(4):
            p.e(f'v_lshlrev_b32 v{b+2*i}, 16, v{b+4+i}')
            p.e(f'v_and_b32 v{b+2*i+1}, s7, v{b+4+i}')
        p.e(f'v_pk_add_f32 v[{T}:{T+1}], v[{b}:{b+1}], v[{b+2}:{b+3}]')
        p.e(f'v_pk_mul_f32 v[{T+2}:{T+3}], v[{b}:{b+1}], v[{b}:{b+1}]')
        for i in (1, 2, 3):
            if i > 1:
                p.e(f'v_pk_add_f32 v[{T}:{T+1}], v[{T}:{T+1}], v[{b+2*i}:{b+2*i+1}]')
            p.e(f'v_pk_fma_f32 v[{T+2}:{T+3}], v[{b+2*i}:{b+2*i+1}], v[{b+2*i}:{b+2*i+1}], v[{T+2}:{T+3}]')
        p.e(f'v_add_f32 v{VSUM+r}, v{T}, v{T+1}')
        p.e(f'v_add_f32 v{VSQ+r}, v{T+2}, v{T+3}')
    for r in range(20):
        p.e(f'v_permlane32_swap_b32 v{VSUM+r}, v{VSQ+r}')
    for r in range(20):
        p.e(f'v_add_f32 v{VSUM+r}, v{VSUM+r}, v{VSQ+r}')
    for m in range(10):
        p.e(f'v_permlane16_swap_b32 v{VSUM+2*m}, v{VSUM+2*m+1}')
    for m in range(10):
        p.e(f'v_add_f32 v{VSQ+m}, v{VSUM+2*m}, v{VSUM+2*m+1}')
    for sh in (8, 4, 2, 1):
        for m in range(10):
            p.e(f'v_add_f32_dpp v{VSQ+m}, v{VSQ+m}, v{VSQ+m} row_ror:{sh} row_mask:0xf bank_mask:0xf')
    for m in range(10):
        p.e(f'v_mov_b32 v{VSUM+m}, v{VSQ+m}')
    for m in range(10):
        p.e(f'v_permlane32_swap_b32 v{VSUM+m}, v{VSQ+m}')
    inv = hexf(1.0 / 512)
    for m in range(10):
        p.e(f'v_mul_f32 v{VSUM+m}, {inv}, v{VSUM+m}')
    for m in range(10):
        p.e(f'v_mul_f32 v{VSUM+10+m}, v{VSUM+m}, v{VSUM+m}')
    p.e(f's_mov_b32 s28, {inv}')
    for m in range(10):
        p.e(f'v_fma_f32 v{VSQ+m}, v{VSQ+m}, s28, -v{VSUM+10+m}')
    for m in range(10):
        p.e(f'v_max_f32 v{VSQ+m}, 0, v{VSQ+m}')
    for m in range(10):
        p.e(f'v_add_f32 v{VSQ+m}, {hexf(1e-5)}, v{VSQ+m}')
    for m in range(10):
        p.e(f'v_rsq_f32 v{VSQ+m}, v{VSQ+m}')
    for m in range(10):
        p.e(f'v_mul_f32 v{VSUM+m}, -v{VSUM+m}, v{VSQ+m}')
    SR = 60
    for m in range(10):
        for h in range(2):
            r = 2 * m + h
            p.e(f'v_readlane_b32 s{SR+2*r}, v{VSQ+m}, {16*h}')
            p.e(f'v_readlane_b32 s{SR+2*r+1}, v{VSUM+m}, {16*h}')
    p.e('v_lshrrev_b32 v7, 2, v0')
    p.e('v_and_b32 v8, 3, v0')
    p.e('v_and_b32 v9, 1, v7')
    p.e('v_lshl_or_b32 v9, v9, 2, v8')
    p.e('v_lshlrev_b32 v7, 10, v7')
    p.e('v_lshl_or_b32 v7, v8, 8, v7')
    p.e('v_lshl_or_b32 v7, v9, 4, v7')
    p.e(f's_lshl_b32 s28, s{S_W}, 14')
    p.e('v_add_u32 v8, s28, v7')
    p.e('v_add_u32 v9, 0x10000, v7')
    for r in range(20):
        b = XB + 8 * r
        sr = SR + 2 * r
        for i in range(4):
            p.e(f'v_pk_fma_f32 v[{b+2*i}:{b+2*i+1}], v[{b+2*i}:{b+2*i+1}], s[{sr}:{sr+1}], s[{sr}:{sr+1}] op_sel:[0,0,1] op_sel_hi:[1,0,1]')
        for i in range(4):
            p.e(f'v_pk_fma_f32 v[{b+2*i}:{b+2*i+1}], v[{b+2*i}:{b+2*i+1}], v[{VC+2*i}:{VC+2*i+1}], v[{VS+2*i}:{VS+2*i+1}]')
        for i in range(4):
            p.e(f'v_cvt_pk_bf16_f32 v{b+i}, v{b+2*i}, v{b+2*i+1}')
        if r < 16:
            p.e(f'v_xor_b32 v{T+(r&1)}, {r << 4}, v8')
        else:
            p.e(f's_lshl_b32 s28, s{S_W}, 6')
            p.e(f's_add_u32 s28, s28, {(r-16) << 4}')
            p.e(f'v_xor_b32 v{T+(r&1)}, s28, v9')
        p.e(f'ds_write_b128 v{T+(r&1)}, v[{b}:{b+3}]')
    for c in range(8):
        p.wait_tag(('BW', c))
        p.e('s_waitcnt lgkmcnt(0)')
        p.e('s_barrier')
        if c + 2 < 8:
            dma_chunk(c + 2)
        slot = c % 3
        base = 6 if slot == 2 else 5
        so = 0 if slot == 2 else slot * 24576
        for part in range(3):
            for ksl in range(2):
                ks = 2 * c + ksl
                for t in range(2):
                    ar = (part * 16 + ks) * 4 + 2 * t
                    p.e(f'ds_read_b64_tr_b16 a[{ar}:{ar+1}], v{base} offset:{so + part*8192 + ksl*4096 + t*512}')
    AQ, AK, AV, HF = 16, 32, 52, 72
    p.e('v_and_b32 v7, 15, v0')
    p.e('v_lshrrev_b32 v8, 4, v0')
    p.e('v_xor_b32 v9, v7, v8')
    p.e('v_lshlrev_b32 v9, 4, v9')
    p.e('v_lshl_or_b32 v10, v8, 8, v9')
    p.e('v_xor_b32 v11, 64, v10')
    p.e('v_add_u32 v12, 0x10000, v10')
    p.e('v_add_u32 v13, 0x10000, v11')

    def hreads(ks):
        bufb = HF + 20 * (ks & 1)
        for tau in range(5):
            if tau < 4:
                p.e(f'ds_read_b128 v[{bufb+4*tau}:{bufb+4*tau+3}], v{10 + (ks & 1)} offset:{tau*16384 + ks*1024}')
            else:
                p.e(f'ds_read_b128 v[{bufb+4*tau}:{bufb+4*tau+3}], v{12 + (ks & 1)} offset:{ks*1024}')

    p.e('s_waitcnt lgkmcnt(0)')
    hreads(0)
    for ks in range(16):
        if ks < 15:
            hreads(ks + 1)
        bufb = HF + 20 * (ks & 1)
        for tau in range(5):
            hf = f'v[{bufb+4*tau}:{bufb+4*tau+3}]'
            wq, wk, wv = [f'a[{(part*16+ks)*4}:{(part*16+ks)*4+3}]' for part in range(3)]
            if tau < 4:
                d = f'v[{AQ+4*tau}:{AQ+4*tau+3}]'
                p.e(f'v_mfma_f32_16x16x32_bf16 {d}, {wq}, {hf}, {d if ks else 0}')
            d = f'v[{AK+4*tau}:{AK+4*tau+3}]'
            p.e(f'v_mfma_f32_16x16x32_bf16 {d}, {wk}, {hf}, {d if ks else 0}')
            d = f'v[{AV+4*tau}:{AV+4*tau+3}]'
            p.e(f'v_mfma_f32_16x16x32_bf16 {d}, {hf}, {wv}, {d if ks else 0}')
    QB, KB, VE, VO, ONES = 112, 120, 130, 136, 142
    SS_, MM, TT, PP, OO, SM, OR = 146, 178, 182, 186, 202, 218, 234
    NEG = 242
    MC, MP, ME, MO = 60, 68, 76, 84
    p.e('v_lshlrev_b32 v9, 2, v8')
    for i in range(4):
        p.e(f'v_add_u32 v14, {i}, v9')
        p.e('v_sub_u32 v15, v7, v14')
        p.e(f'v_cmp_ge_u32 s[{MC+2*i}:{MC+2*i+1}], 7, v15')
        p.e(f'v_cmp_ge_i32 s[{MP+2*i}:{MP+2*i+1}], -9, v15')
        p.e(f'v_cmp_ge_i32 s[{ME+2*i}:{ME+2*i+1}], -1, v15')
        p.e(f'v_cmp_ge_u32 vcc, 7, v14')
        p.e(f's_and_b64 s[{ME+2*i}:{ME+2*i+1}], s[{ME+2*i}:{ME+2*i+1}], vcc')
        p.e(f's_cmp_eq_u32 s{S_RB}, 0')
        p.e(f's_cselect_b64 s[{ME+2*i}:{ME+2*i+1}], 0, s[{ME+2*i}:{ME+2*i+1}]')
        p.e(f's_cselect_b64 s[{MO+2*i}:{MO+2*i+1}], 0, s[{MP+2*i}:{MP+2*i+1}]')
    p.e(f'v_mov_b32 v{NEG}, {hexf(-1e30)}')
    for i in range(4):
        p.e(f'v_mov_b32 v{ONES+i}, 0x3f803f80')
    for tau in range(4):
        for i in range(2):
            p.e(f'v_cvt_pk_bf16_f32 v{QB+2*tau+i}, v{AQ+4*tau+2*i}, v{AQ+4*tau+2*i+1}')
    for tau in range(5):
        for i in range(2):
            p.e(f'v_cvt_pk_bf16_f32 v{KB+2*tau+i}, v{AK+4*tau+2*i}, v{AK+4*tau+2*i+1}')
    for dst, tau in ((VE, 4), (VE + 2, 0), (VE + 4, 2), (VO, 4), (VO + 2, 1), (VO + 4, 3)):
        for i in range(2):
            p.e(f'v_cvt_pk_bf16_f32 v{dst+i}, v{AV+4*tau+2*i}, v{AV+4*tau+2*i+1}')
    prevt = {0: 4, 1: 4, 2: 0, 3: 1}
    pmask = {0: ME, 1: MO, 2: MP, 3: MP}
    vfr = {0: VE, 2: VE + 2, 1: VO, 3: VO + 2}
    for u in range(4):
        sp, sc = SS_ + 8 * u, SS_ + 8 * u + 4
        q = f'v[{QB+2*u}:{QB+2*u+1}]'
        p.e(f'v_mfma_f32_16x16x16_bf16 v[{sp}:{sp+3}], v[{KB+2*prevt[u]}:{KB+2*prevt[u]+1}], {q}, 0')
        p.e(f'v_mfma_f32_16x16x16_bf16 v[{sc}:{sc+3}], v[{KB+2*u}:{KB+2*u+1}], {q}, 0')
    for u in range(4):
        sp, sc = SS_ + 8 * u, SS_ + 8 * u + 4
        for i in range(4):
            p.e(f'v_cndmask_b32 v{sp+i}, v{NEG}, v{sp+i}, s[{pmask[u]+2*i}:{pmask[u]+2*i+1}]')
        for i in range(4):
            p.e(f'v_cndmask_b32 v{sc+i}, v{NEG}, v{sc+i}, s[{MC+2*i}:{MC+2*i+1}]')
    for u in range(4):
        sp = SS_ + 8 * u
        p.e(f'v_max3_f32 v{MM+u}, v{sp}, v{sp+1}, v{sp+2}')
    for u in range(4):
        sp = SS_ + 8 * u
        p.e(f'v_max3_f32 v{MM+u}, v{MM+u}, v{sp+3}, v{sp+4}')
    for u in range(4):
        sp = SS_ + 8 * u
        p.e(f'v_max3_f32 v{MM+u}, v{MM+u}, v{sp+5}, v{sp+6}')
    for u in range(4):
        sp = SS_ + 8 * u
        p.e(f'v_max_f32 v{MM+u}, v{MM+u}, v{sp+7}')
    for swp in ('v_permlane32_swap_b32', 'v_permlane16_swap_b32'):
        for u in range(4):
            p.e(f'v_mov_b32 v{TT+u}, v{MM+u}')
        for u in range(4):
            p.e(f'{swp} v{TT+u}, v{MM+u}')
        for u in range(4):
            p.e(f'v_max_f32 v{MM+u}, v{MM+u}, v{TT+u}')
    sc_ = 0.25 * LOG2E
    p.e(f's_mov_b32 s28, {hexf(sc_)}')
    for u in range(4):
        p.e(f'v_mul_f32 v{MM+u}, {hexf(-sc_)}, v{MM+u}')
    for u in range(4):
        sp = SS_ + 8 * u
        for i in range(8):
            p.e(f'v_fma_f32 v{sp+i}, v{sp+i}, s28, v{MM+u}')
    for u in range(4):
        sp = SS_ + 8 * u
        for i in range(8):
            p.e(f'v_exp_f32 v{sp+i}, v{sp+i}')
    for u in range(4):
        sp = SS_ + 8 * u
        for i in range(4):
            p.e(f'v_cvt_pk_bf16_f32 v{PP+4*u+i}, v{sp+2*i}, v{sp+2*i+1}')
    for u in range(4):
        pf = f'v[{PP+4*u}:{PP+4*u+3}]'
        p.e(f'v_mfma_f32_16x16x32_bf16 v[{OO+4*u}:{OO+4*u+3}], v[{vfr[u]}:{vfr[u]+3}], {pf}, 0')
        p.e(f'v_mfma_f32_16x16x32_bf16 v[{SM+4*u}:{SM+4*u+3}], v[{ONES}:{ONES+3}], {pf}, 0')
    for u in range(4):
        p.e(f'v_rcp_f32 v{SM+4*u}, v{SM+4*u}')
    for u in range(4):
        for i in range(4):
            p.e(f'v_mul_f32 v{OO+4*u+i}, v{OO+4*u+i}, v{SM+4*u}')
    for t in range(2):
        for par in range(2):
            u = 2 * t + par
            for i in range(2):
                p.e(f'v_cvt_pk_bf16_f32 v{OR+4*t+2*par+i}, v{OO+4*u+2*i}, v{OO+4*u+2*i+1}')
    for t in range(2):
        for i in range(2):
            p.e(f'v_permlane32_swap_b32 v{OR+4*t+i}, v{OR+4*t+2+i}')
    p.e('v_bfe_u32 v9, v0, 4, 1')
    p.e('v_lshlrev_b32 v9, 5, v9')
    p.e('v_lshrrev_b32 v14, 5, v0')
    p.e('v_lshl_or_b32 v9, v14, 4, v9')
    p.e('v_or_b32 v9, v9, v7')
    p.e('v_lshlrev_b32 v9, 4, v9')
    p.e(f's_lshl_b32 s24, s{S_RB}, 6')
    p.e(f's_lshl_b32 s25, s{S_HG}, 2')
    p.e('s_add_u32 s24, s24, s25')
    p.e(f's_add_u32 s24, s24, s{S_W}')
    p.e('s_lshl_b32 s24, s24, 10')
    p.e(f's_add_u32 s24, s24, {LY.WS_O}')
    p.e(f'buffer_store_dwordx4 v[{OR}:{OR+3}], v9, s[{SWS}:{SWS+3}], s24 offen sc1')
    p.e(f's_add_u32 s24, s24, {32 * 1024}')
    p.e(f'buffer_store_dwordx4 v[{OR+4}:{OR+7}], v9, s[{SWS}:{SWS+3}], s24 offen sc1')


G_ACC = 16
G_BF = 80


def g64_setup(p, wptr, wsize, nks, wave_lds):
    srd(p, SW1, wptr, wsize)
    p.e('v_lshrrev_b32 v6, 3, v0')
    p.e('v_and_b32 v7, 7, v0')
    p.e('v_bfe_u32 v8, v0, 4, 1')
    p.e('v_lshlrev_b32 v8, 2, v8')
    p.e('v_xor_b32 v7, v7, v8')
    p.e('v_lshlrev_b32 v6, 10, v6')
    p.e('v_lshl_add_u32 v3, v7, 4, v6')
    p.e(f's_mul_i32 s26, s{S_W}, {nks * 16 * 1024}')
    p.e(f's_lshl_b32 s27, s{S_HG}, 7')
    p.e('s_add_u32 s26, s26, s27')
    p.e(f's_mul_i32 s27, s{S_W}, {wave_lds}')
    p.e('v_lshrrev_b32 v6, 5, v0')
    p.e('v_bfe_u32 v7, v0, 4, 1')
    p.e('v_bfe_u32 v8, v0, 2, 2')
    p.e('v_and_b32 v9, 3, v0')
    p.e('v_lshl_add_u32 v10, v6, 2, v8')
    p.e('v_lshlrev_b32 v10, 7, v10')
    p.e('v_lshrrev_b32 v11, 1, v9')
    p.e('v_lshl_or_b32 v11, v7, 1, v11')
    p.e('v_bfe_u32 v12, v8, 1, 1')
    p.e('v_lshl_or_b32 v11, v12, 2, v11')
    p.e('v_lshl_add_u32 v10, v11, 4, v10')
    p.e('v_and_b32 v9, 1, v9')
    p.e('v_lshl_add_u32 v10, v9, 3, v10')
    p.e('v_add_u32 v4, s27, v10')
    p.e('v_xor_b32 v5, 64, v10')
    p.e('v_add_u32 v5, s27, v5')


def g64_dma_group(p, g, slot, lds_base=0):
    for m in range(8):
        p.e(f's_add_u32 s28, s26, {(64 * g + 8 * m) * 1024}')
        p.e(f's_add_u32 m0, s27, {lds_base + slot * 8192 + m * 1024}')
        p.e(f'buffer_load_dwordx4 v3, s[{SW1}:{SW1+3}], s28 offen lds', tag=('GW', g))


def g64_tr_group(p, g, slot, lds_base=0):
    for ksl in range(4):
        for ft in range(2):
            for t in range(2):
                ar = ((g * 4 + ksl) * 2 + ft) * 4 + 2 * t
                p.e(f'ds_read_b64_tr_b16 a[{ar}:{ar+1}], v{4+ft} offset:{lds_base + slot*8192 + ksl*2048 + t*1024}')


def g64_reduce(p, red):
    p.e('v_lshlrev_b32 v6, 4, v0')
    p.e(f's_lshl_b32 s28, s{S_W}, 12')
    p.e(f's_add_u32 s28, s28, {red}')
    p.e('v_add_u32 v7, s28, v6')
    for d in range(4):
        ti = (d & 1) * 2 + (d >> 1)
        for q in range(4):
            r = G_ACC + 16 * ti + 4 * q
            p.e(f'ds_write_b128 v7, v[{r}:{r+3}] offset:{d*16384 + q*1024}')
    p.e(f's_lshl_b32 s28, s{S_W}, 14')
    p.e(f's_add_u32 s28, s28, {red}')
    p.e('v_add_u32 v7, s28, v6')
    p.e('s_waitcnt lgkmcnt(0)')
    p.e('s_barrier')
    for src in range(4):
        for q in range(4):
            r = G_ACC + 16 * src + 4 * q
            p.e(f'ds_read_b128 v[{r}:{r+3}], v7 offset:{src*4096 + q*1024}')
    for i in range(0, 16, 2):
        r = G_ACC + i
        p.e(f'v_pk_add_f32 v[{r}:{r+1}], v[{r}:{r+1}], v[{r+16}:{r+17}]')
    for i in range(0, 16, 2):
        r = G_ACC + i
        p.e(f'v_pk_add_f32 v[{r+32}:{r+33}], v[{r+32}:{r+33}], v[{r+48}:{r+49}]')
    for i in range(0, 16, 2):
        r = G_ACC + i
        p.e(f'v_pk_add_f32 v[{r}:{r+1}], v[{r}:{r+1}], v[{r+32}:{r+33}]')


def g64_tile_ids(p):
    p.e(f's_lshr_b32 s29, s{S_W}, 1')
    p.e(f's_lshl_b32 s30, s{S_RB}, 1')
    p.e('s_add_u32 s29, s29, s30')
    p.e(f's_and_b32 s30, s{S_W}, 1')


def g64_vec16(p, dst, modidx):
    p.e('v_lshrrev_b32 v9, 5, v0')
    p.e('v_lshlrev_b32 v9, 4, v9')
    p.e(f's_lshl_b32 s28, s{S_HG}, 8')
    p.e('s_lshl_b32 s31, s30, 7')
    p.e('s_add_u32 s28, s28, s31')
    p.e(f's_add_u32 s28, s28, {LY.WS_MOD + modidx * 2048}')
    for j in range(4):
        p.e(f'buffer_load_dwordx4 v[{dst+4*j}:{dst+4*j+3}], v9, s[{SWS}:{SWS+3}], s28 offen offset:{32*j} sc1')


def rowlocal_1024(p, dst):
    p.e(f'v_and_b32 v{dst}, 15, v0')
    p.e(f'v_lshlrev_b32 v{dst}, 1, v{dst}')
    p.e('v_bfe_u32 v15, v0, 4, 1')
    p.e(f'v_or_b32 v{dst}, v{dst}, v15')
    p.e(f'v_lshlrev_b32 v{dst}, 10, v{dst}')


def phase_C(p):
    srd(p, SX, P_X, 2048 * 1024)
    srd(p, SWS, P_WS, LY.WS_USED)
    ids_rb(p)
    p.e('s_mov_b32 s7, 0xffff0000')
    g64_setup(p, P_WO, 512 * 1024, 8, 16384)
    g64_dma_group(p, 0, 0)
    g64_dma_group(p, 1, 1)
    g64_tile_ids(p)
    p.e('v_lshlrev_b32 v1, 4, v0')
    for t in range(2):
        p.e(f's_lshl_b32 s24, s{S_RB}, 1')
        p.e(f's_add_u32 s24, s24, {t}')
        p.e('s_lshl_b32 s24, s24, 5')
        p.e(f's_lshl_b32 s25, s{S_W}, 3')
        p.e('s_add_u32 s24, s24, s25')
        p.e('s_lshl_b32 s24, s24, 10')
        p.e(f's_add_u32 s24, s24, {LY.WS_O}')
        for i in range(8):
            r = G_BF + (t * 8 + i) * 4
            if i == 4:
                p.e('s_add_u32 s24, s24, 4096')
            p.e(f'buffer_load_dwordx4 v[{r}:{r+3}], v1, s[{SWS}:{SWS+3}], s24 offen offset:{(i & 3) * 1024} sc1')
    XR, GA = 144, 152
    rowlocal_1024(p, 8)
    p.e('v_lshrrev_b32 v9, 5, v0')
    p.e('v_lshl_add_u32 v8, v9, 3, v8')
    p.e('s_lshl_b32 s24, s29, 15')
    p.e(f's_lshl_b32 s25, s{S_HG}, 7')
    p.e('s_add_u32 s24, s24, s25')
    p.e('s_lshl_b32 s25, s30, 6')
    p.e('s_add_u32 s24, s24, s25')
    for j in range(4):
        p.e(f'buffer_load_dwordx2 v[{XR+2*j}:{XR+2*j+1}], v8, s[{SX}:{SX+3}], s24 offen offset:{16*j}')
    g64_vec16(p, GA, 2)
    for g in range(2):
        p.wait_tag(('GW', g))
        g64_tr_group(p, g, g)
    for i in range(8):
        for ft in range(2):
            for t in range(2):
                d = G_ACC + 16 * (ft * 2 + t)
                ar = (i * 2 + ft) * 4
                br = G_BF + (t * 8 + i) * 4
                dd = f'v[{d}:{d+15}]'
                p.e(f'v_mfma_f32_32x32x16_bf16 {dd}, a[{ar}:{ar+3}], v[{br}:{br+3}], {dd if i else 0}')
    g64_reduce(p, 65536)
    XF = 32
    for j in range(4):
        for d in range(2):
            p.e(f'v_lshlrev_b32 v{XF+4*j+2*d}, 16, v{XR+2*j+d}')
            p.e(f'v_and_b32 v{XF+4*j+2*d+1}, s7, v{XR+2*j+d}')
    for i in range(16):
        p.e(f'v_fmac_f32 v{XF+i}, v{GA+i}, v{G_ACC+i}')
    PK = 48
    for i in range(8):
        p.e(f'v_cvt_pk_bf16_f32 v{PK+i}, v{XF+2*i}, v{XF+2*i+1}')
    p.e('s_lshl_b32 s24, s29, 5')
    p.e(f's_lshl_b32 s25, s{S_HG}, 2')
    p.e('s_add_u32 s24, s24, s25')
    p.e('s_lshl_b32 s25, s30, 1')
    p.e('s_add_u32 s24, s24, s25')
    p.e('s_lshl_b32 s24, s24, 10')
    p.e(f's_add_u32 s24, s24, {LY.WS_X1}')
    p.e(f'buffer_store_dwordx4 v[{PK}:{PK+3}], v1, s[{SWS}:{SWS+3}], s24 offen sc1')
    p.e(f'buffer_store_dwordx4 v[{PK+4}:{PK+7}], v1, s[{SWS}:{SWS+3}], s24 offen offset:1024 sc1')
    for i in range(8):
        p.e(f'v_lshlrev_b32 v{XF+2*i}, 16, v{PK+i}')
        p.e(f'v_and_b32 v{XF+2*i+1}, s7, v{PK+i}')
    p.e(f'v_pk_add_f32 v[56:57], v[{XF}:{XF+1}], v[{XF+2}:{XF+3}]')
    p.e(f'v_pk_mul_f32 v[58:59], v[{XF}:{XF+1}], v[{XF}:{XF+1}]')
    for i in range(1, 8):
        if i > 1:
            p.e(f'v_pk_add_f32 v[56:57], v[56:57], v[{XF+2*i}:{XF+2*i+1}]')
        p.e(f'v_pk_fma_f32 v[58:59], v[{XF+2*i}:{XF+2*i+1}], v[{XF+2*i}:{XF+2*i+1}], v[58:59]')
    p.e('v_add_f32 v60, v56, v57')
    p.e('v_add_f32 v61, v58, v59')
    p.e('v_mov_b32 v62, v60')
    p.e('v_mov_b32 v63, v61')
    p.e('v_permlane32_swap_b32 v62, v60')
    p.e('v_permlane32_swap_b32 v63, v61')
    p.e('v_add_f32 v60, v60, v62')
    p.e('v_add_f32 v61, v61, v63')
    p.e('v_and_b32 v6, 31, v0')
    p.e('v_lshlrev_b32 v6, 3, v6')
    p.e('s_lshl_b32 s24, s29, 4')
    p.e(f's_lshl_b32 s25, s{S_HG}, 1')
    p.e('s_add_u32 s24, s24, s25')
    p.e('s_add_u32 s24, s24, s30')
    p.e('s_lshl_b32 s24, s24, 8')
    p.e(f's_add_u32 s24, s24, {LY.WS_STATS}')
    p.e(f'buffer_store_dwordx2 v[60:61], v6, s[{SWS}:{SWS+3}], s24 offen sc1')


def phase_E(p):
    srd(p, SWS, P_WS, LY.WS_USED)
    srd(p, SOUT, P_OUT, 2048 * 1024)
    ids_rb(p)
    p.e('s_mov_b32 s7, 0xffff0000')
    g64_setup(p, P_WD, 1792 * 1024, 28, 32768)
    for g in range(4):
        g64_dma_group(p, g, g)
    g64_tile_ids(p)
    NR = 20
    p.e('v_lshlrev_b32 v1, 4, v0')
    for t in range(2):
        p.e(f's_lshl_b32 s{32+t}, s{S_RB}, 1')
        p.e(f's_add_u32 s{32+t}, s{32+t}, {t}')
        p.e(f's_mul_i32 s{32+t}, s{32+t}, 112')
        p.e(f's_mul_i32 s25, s{S_W}, 28')
        p.e(f's_add_u32 s{32+t}, s{32+t}, s25')
        p.e(f's_lshl_b32 s{32+t}, s{32+t}, 10')
        p.e(f's_add_u32 s{32+t}, s{32+t}, {LY.WS_HH}')

    def bload(i):
        for t in range(2):
            r = G_BF + ((i % NR) * 2 + t) * 4
            if i % 4 == 0:
                p.e(f's_add_u32 s{34+t}, s{32+t}, {(i // 4) * 4096}')
            p.e(f'buffer_load_dwordx4 v[{r}:{r+3}], v1, s[{SWS}:{SWS+3}], s{34+t} offen offset:{(i & 3) * 1024} sc1')

    for g in range(7):
        p.wait_tag(('GW', g))
        g64_tr_group(p, g, g % 4)
        if g + 4 < 7:
            p.e('s_waitcnt lgkmcnt(0)')
            g64_dma_group(p, g + 4, g % 4)
    for i in range(NR):
        bload(i)
    XR, GB = 240, 240
    for i in range(28):
        for ft in range(2):
            for t in range(2):
                d = G_ACC + 16 * (ft * 2 + t)
                ar = (i * 2 + ft) * 4
                br = G_BF + ((i % NR) * 2 + t) * 4
                dd = f'v[{d}:{d+15}]'
                p.e(f'v_mfma_f32_32x32x16_bf16 {dd}, a[{ar}:{ar+3}], v[{br}:{br+3}], {dd if i else 0}')
        if i + NR < 28:
            bload(i + NR)
    XR, GB = 80, 96
    p.e('s_lshl_b32 s24, s29, 5')
    p.e(f's_lshl_b32 s25, s{S_HG}, 2')
    p.e('s_add_u32 s24, s24, s25')
    p.e('s_lshl_b32 s25, s30, 1')
    p.e('s_add_u32 s24, s24, s25')
    p.e('s_lshl_b32 s24, s24, 10')
    p.e(f's_add_u32 s24, s24, {LY.WS_X1}')
    p.e(f'buffer_load_dwordx4 v[{XR}:{XR+3}], v1, s[{SWS}:{SWS+3}], s24 offen sc1')
    p.e(f'buffer_load_dwordx4 v[{XR+4}:{XR+7}], v1, s[{SWS}:{SWS+3}], s24 offen offset:1024 sc1')
    g64_vec16(p, GB, 5)
    p.e('s_barrier')
    g64_reduce(p, 0)
    XF = 32
    for i in range(8):
        p.e(f'v_lshlrev_b32 v{XF+2*i}, 16, v{XR+i}')
        p.e(f'v_and_b32 v{XF+2*i+1}, s7, v{XR+i}')
    for i in range(16):
        p.e(f'v_fmac_f32 v{XF+i}, v{GB+i}, v{G_ACC+i}')
    PK = 48
    for i in range(8):
        p.e(f'v_cvt_pk_bf16_f32 v{PK+i}, v{XF+2*i}, v{XF+2*i+1}')
    for jj in range(2):
        p.e(f'v_permlane32_swap_b32 v{PK+4*jj}, v{PK+4*jj+2}')
        p.e(f'v_permlane32_swap_b32 v{PK+4*jj+1}, v{PK+4*jj+3}')
    rowlocal_1024(p, 8)
    p.e('v_lshrrev_b32 v9, 5, v0')
    p.e('v_lshl_add_u32 v8, v9, 4, v8')
    p.e('s_lshl_b32 s24, s29, 15')
    p.e(f's_lshl_b32 s25, s{S_HG}, 7')
    p.e('s_add_u32 s24, s24, s25')
    p.e('s_lshl_b32 s25, s30, 6')
    p.e('s_add_u32 s24, s24, s25')
    for jj in range(2):
        p.e(f'buffer_store_dwordx4 v[{PK+4*jj}:{PK+4*jj+3}], v8, s[{SOUT}:{SOUT+3}], s24 offen offset:{32*jj}')


D_SLOT = 28928
D_NSLOT = 5
D_CS = D_SLOT * D_NSLOT


def phase_D(p):
    ACC = 16
    XR = 128
    HF = 160
    CS = 168
    NT = 200
    VR, VM = 208, 209
    VOFF = 210
    VA, VAC = 217, 218
    VAN = 219
    VCS = 220
    S_RBD, S_FS, S_T = 4, 5, 6
    srd(p, SWS, P_WS, LY.WS_USED)
    p.e('s_and_b32 s24, s2, 7')
    p.e('s_lshr_b32 s25, s2, 3')
    p.e('s_bfe_u32 s26, s25, 0x10001')
    p.e('s_lshl_b32 s24, s24, 1')
    p.e(f's_add_u32 s{S_RBD}, s24, s26')
    p.e('s_lshr_b32 s26, s25, 2')
    p.e('s_lshl_b32 s26, s26, 1')
    p.e('s_and_b32 s25, s25, 1')
    p.e(f's_add_u32 s{S_FS}, s26, s25')
    p.e(f's_lshl_b32 s{S_T}, s{S_RBD}, 2')
    p.e(f's_add_u32 s{S_T}, s{S_T}, s{S_W}')
    p.e('s_mov_b32 s7, 0xffff0000')
    p.e(f's_bitcmp1_b32 s{S_W}, 0')
    p.e(f's_cselect_b32 s{SW1}, s{P_WU}, s{P_WG}')
    p.e(f's_cselect_b32 s{SW1+1}, s{P_WU+1}, s{P_WG+1}')
    p.e(f's_mov_b32 s{SW1+2}, {512 * 3584}')
    p.e(f's_mov_b32 s{SW1+3}, 0x20000')
    for m in range(7):
        p.e(f'v_add_u32 v6, {64*m}, v0')
        p.e('v_mul_u32_u24 v7, 4682, v6')
        p.e('v_lshrrev_b32 v7, 16, v7')
        p.e('v_mul_u32_u24 v8, 14, v7')
        p.e('v_sub_u32 v8, v6, v8')
        p.e('v_mul_u32_u24 v7, 3584, v7')
        p.e(f'v_lshl_add_u32 v{VOFF+m}, v8, 4, v7')
    p.e(f's_lshr_b32 s24, s{S_W}, 1')
    p.e(f's_mul_i32 s26, s24, {32 * 3584}')
    p.e(f's_mul_i32 s25, s{S_FS}, 224')
    p.e('s_add_u32 s26, s26, s25')
    p.e(f's_mul_i32 s27, s24, 14464')
    p.e(f's_and_b32 s24, s{S_W}, 1')
    p.e(f's_mul_i32 s24, s24, 7296')
    p.e('s_add_u32 s27, s27, s24')
    p.e('s_mov_b32 s32, s26')
    p.e('s_mov_b32 s33, 0')

    def dma_quad(tag):
        p.e('s_add_u32 s34, s33, s27')
        for m in range(7):
            p.e(f's_add_u32 m0, s34, {1024*m}')
            p.e(f'buffer_load_dwordx4 v{VOFF+m}, s[{SW1}:{SW1+3}], s32 offen lds', tag=tag)
        p.e(f's_add_u32 s32, s32, {64 * 3584}')
        p.e(f's_add_u32 s33, s33, {D_SLOT}')
        p.e(f's_cmp_eq_u32 s33, {D_SLOT * D_NSLOT}')
        p.e('s_cselect_b32 s33, 0, s33')

    for q in range(4):
        dma_quad(('DW', q))
    p.e('v_lshlrev_b32 v1, 4, v0')
    p.e(f's_lshl_b32 s35, s{S_T}, 15')
    p.e(f's_add_u32 s35, s35, {LY.WS_X1}')

    def xload(pos, last=False):
        r = XR + 4 * pos
        p.e(f'buffer_load_dwordx4 v[{r}:{r+3}], v1, s[{SWS}:{SWS+3}], s35 offen offset:{(pos & 3) * 1024} sc1')
        if (pos & 3) == 3:
            p.e('s_add_u32 s35, s35, 4096')
    for pos in range(8):
        xload(pos)
    p.e('v_and_b32 v6, 31, v0')
    p.e('v_lshlrev_b32 v6, 3, v6')
    p.e('v_lshrrev_b32 v7, 5, v0')
    p.e('v_lshl_add_u32 v6, v7, 11, v6')
    p.e(f's_lshl_b32 s24, s{S_T}, 12')
    p.e(f's_add_u32 s24, s24, {LY.WS_STATS}')
    for pp in range(8):
        p.e(f'buffer_load_dwordx2 v[{ACC+2*pp}:{ACC+2*pp+1}], v6, s[{SWS}:{SWS+3}], s24 offen offset:{256*pp} sc1')
    p.e(f's_lshl_b32 s24, s{S_W}, 6')
    p.e('v_add_u32 v8, s24, v0')
    p.e('v_lshrrev_b32 v9, 3, v8')
    p.e('v_lshlrev_b32 v9, 4, v9')
    p.e('v_bfe_u32 v10, v8, 2, 1')
    p.e('v_lshl_add_u32 v9, v10, 2, v9')
    p.e('v_and_b32 v10, 1, v8')
    p.e('v_lshl_add_u32 v9, v10, 3, v9')
    p.e('v_bfe_u32 v10, v8, 1, 1')
    p.e('v_xor_b32 v10, 1, v10')
    p.e('v_lshl_add_u32 v9, v10, 9, v9')
    p.e('v_lshlrev_b32 v9, 2, v9')
    p.e(f's_mov_b32 s24, {LY.WS_MOD + 3 * 2048}')
    p.e(f'buffer_load_dwordx4 v[{ACC+16}:{ACC+19}], v9, s[{SWS}:{SWS+3}], s24 offen sc1')
    p.e('v_lshlrev_b32 v8, 4, v8')
    p.e(f'v_add_u32 v8, {D_CS}, v8')
    p.e(f'ds_write_b128 v8, v[{ACC+16}:{ACC+19}]')
    for pp in range(1, 8):
        p.e(f'v_pk_add_f32 v[{ACC}:{ACC+1}], v[{ACC}:{ACC+1}], v[{ACC+2*pp}:{ACC+2*pp+1}]')
    p.e(f'v_mov_b32 v{ACC+2}, v{ACC}')
    p.e(f'v_mov_b32 v{ACC+3}, v{ACC+1}')
    p.e(f'v_permlane32_swap_b32 v{ACC+2}, v{ACC}')
    p.e(f'v_permlane32_swap_b32 v{ACC+3}, v{ACC+1}')
    p.e(f'v_pk_add_f32 v[{ACC}:{ACC+1}], v[{ACC}:{ACC+1}], v[{ACC+2}:{ACC+3}]')
    inv = hexf(1.0 / 512)
    p.e(f'v_mul_f32 v{ACC}, {inv}, v{ACC}')
    p.e(f'v_mul_f32 v{ACC+1}, {inv}, v{ACC+1}')
    p.e(f'v_fma_f32 v{ACC+1}, -v{ACC}, v{ACC}, v{ACC+1}')
    p.e(f'v_max_f32 v{ACC+1}, 0, v{ACC+1}')
    p.e(f'v_add_f32 v{ACC+1}, {hexf(1e-5)}, v{ACC+1}')
    p.e(f'v_rsq_f32 v{VR}, v{ACC+1}')
    p.e(f'v_mul_f32 v{VM}, -v{ACC}, v{VR}')
    p.e('v_lshrrev_b32 v6, 5, v0')
    p.e('v_bfe_u32 v7, v0, 4, 1')
    p.e('v_bfe_u32 v8, v0, 2, 2')
    p.e('v_and_b32 v9, 3, v0')
    p.e('v_lshl_add_u32 v10, v6, 2, v8')
    p.e('v_mul_u32_u24 v10, 224, v10')
    p.e('v_mul_u32_u24 v7, 7296, v7')
    p.e('v_add_u32 v10, v10, v7')
    p.e(f'v_lshl_add_u32 v{VA}, v9, 3, v10')
    p.e(f'v_lshlrev_b32 v6, 6, v6')
    p.e(f'v_add_u32 v{VCS}, {D_CS}, v6')
    p.e(f'v_mov_b32 v{VAC}, v{VA}')
    p.e('s_mov_b32 s31, 0')

    def trreads(kq, buf, areg):
        for tile in range(7):
            for t2 in range(2):
                ar = buf * 28 + tile * 4 + 2 * t2
                off = (kq >> 1) * 14464 + (kq & 1) * 3584 + t2 * 1792 + tile * 32
                yield f'ds_read_b64_tr_b16 a[{ar}:{ar+1}], v{areg} offset:{off}'

    def csreads(ksoff, buf):
        for q in range(4):
            yield f'ds_read_b128 v[{CS+16*buf+4*q}:{CS+16*buf+4*q+3}], v{VCS} offset:{ksoff*128 + 16*q}'

    def norm(pos, buf):
        x = XR + 4 * pos
        c = CS + 16 * buf
        for i in range(4):
            yield f'v_lshlrev_b32 v{NT+2*i}, 16, v{x+i}'
            yield f'v_and_b32 v{NT+2*i+1}, s7, v{x+i}'
        for i in range(8):
            yield f'v_fma_f32 v{NT+i}, v{NT+i}, v{VR}, v{VM}'
        for i in range(8):
            yield f'v_fma_f32 v{NT+i}, v{NT+i}, v{c+i}, v{c+8+i}'
        for i in range(4):
            yield f'v_cvt_pk_bf16_f32 v{HF+4*buf+i}, v{NT+2*i}, v{NT+2*i+1}'

    for i in range(112):
        p.e(f'v_mov_b32 v{ACC+i}, 0')
    p.wait_tag(('DW', 0))
    p.e('s_waitcnt lgkmcnt(0)')
    p.e('s_barrier')
    for ins in csreads(0, 0):
        p.e(ins)
    for ins in trreads(0, 0, VAC):
        p.e(ins)
    for ins in csreads(1, 1):
        p.e(ins)
    for ins in norm(0, 0):
        p.e(ins)
    xload(0)

    def body():
        for pos in range(8):
            buf = pos & 1
            nb = buf ^ 1
            kq = pos & 3
            fill = []
            if kq == 3:
                pre = True
            else:
                pre = False
            mf = []
            for tile in range(7):
                d = ACC + 16 * tile
                ar = buf * 28 + tile * 4
                mf.append(f'v_mfma_f32_32x32x16_bf16 v[{d}:{d+15}], a[{ar}:{ar+3}], v[{HF+4*buf}:{HF+4*buf+3}], v[{d}:{d+15}]')
            p.e(mf[0])
            if pre:
                p.wait_tag(lambda env, pos=pos: ('DW', 2 * env['D'] + (pos >> 2) + 1))
                p.e('s_barrier')
                p.e(f's_add_u32 s31, s31, {D_SLOT}')
                p.e(f's_cmp_eq_u32 s31, {D_SLOT * D_NSLOT}')
                p.e('s_cselect_b32 s31, 0, s31')
                p.e(f'v_add_u32 v{VAC}, s31, v{VA}')
            nxt_kq = (kq + 1) & 3
            fill += list(trreads(nxt_kq, nb, VAC))
            nrm = list(norm((pos + 1) & 7, nb))
            cs = list(csreads(pos + 2, buf))
            stream = fill + nrm
            per = (len(stream) + 5) // 6
            k = 0
            for i in range(1, 7):
                for ins in stream[k:k + per]:
                    p.e(ins)
                k += per
                p.e(mf[i])
            for ins in stream[k:]:
                p.e(ins)
            xload((pos + 1) & 7)
            for ins in cs:
                p.e(ins)
            if pre:
                dma_quad(lambda env, pos=pos: ('DW', 2 * env['D'] + (pos >> 2) + 4))
        p.e(f'v_add_u32 v{VCS}, 1024, v{VCS}')

    p.loop('D', 4, 100, body)
    kap = hexf(-LOG2E)
    p.e(f's_mul_i32 s24, s{S_T}, 112')
    p.e(f's_mul_i32 s25, s{S_FS}, 7')
    p.e('s_add_u32 s24, s24, s25')
    p.e('s_lshl_b32 s24, s24, 10')
    p.e(f's_add_u32 s24, s24, {LY.WS_HH}')
    for tile in range(7):
        d = ACC + 16 * tile
        for i in range(8):
            p.e(f'v_mul_f32 v{d+i}, {kap}, v{d+i}')
        for i in range(8):
            p.e(f'v_exp_f32 v{d+i}, v{d+i}')
        for i in range(8):
            p.e(f'v_add_f32 v{d+i}, 1.0, v{d+i}')
        for i in range(8):
            p.e(f'v_rcp_f32 v{d+i}, v{d+i}')
        for i in range(8):
            p.e(f'v_mul_f32 v{d+i}, v{d+i}, v{d+8+i}')
        for i in range(4):
            p.e(f'v_cvt_pk_bf16_f32 v{d+8+i}, v{d+2*i}, v{d+2*i+1}')
        if tile == 4:
            p.e('s_add_u32 s24, s24, 4096')
        p.e(f'buffer_store_dwordx4 v[{d+8}:{d+11}], v1, s[{SWS}:{SWS+3}], s24 offen offset:{(tile & 3) * 1024} sc1')
```

```python
import sys, os
sys.path.insert(0, os.path.dirname(__file__))
from asmlib import *
import phases as PH
import layout as LY

NAME = 'adaLN_cond__sliding_local_dilated__glu_gated_glu__prompt'

HEADER = """; Kernarg layout (96 bytes, pointers only, base s[0:1]):
;   0 A_x  8 A_wqkv  16 A_wo  24 B_x (unused)  32 B_w_gate  40 B_w_up  48 B_w_down  56 c  64 w_mod
"""


def kernel_text(label, body_fn, nvgpr=512, accum=256, nsgpr=102):
    p = Prog()
    end = 'L_end_' + label
    body_fn(p, end)
    p.label(end)
    p.e('s_endpgm')
    p.analyze()
    txt = f"""
.text
.globl {label}
.p2align 8
.type {label},@function
{label}:
"""
    txt += p.text()
    desc = f"""
.section .rodata,"a"
.p2align 6
.amdhsa_kernel {label}
  .amdhsa_next_free_vgpr {nvgpr}
  .amdhsa_next_free_sgpr {nsgpr}
  .amdhsa_accum_offset {accum}
  .amdhsa_group_segment_fixed_size 0
  .amdhsa_kernarg_size 96
  .amdhsa_user_sgpr_count 2
  .amdhsa_user_sgpr_kernarg_segment_ptr 1
  .amdhsa_system_sgpr_workgroup_id_x 1
  .amdhsa_float_denorm_mode_32 3
.end_amdhsa_kernel
"""
    return txt, desc


def build_s3(which='mod,b,c,d,e'):
    which = which.split(',')
    ks = []

    def k_mod(p, end):
        PH.prologue(p, 96, end)
        PH.phase_mod(p, end)

    def simple(fn):
        def f(p, end):
            PH.prologue(p, 256, end)
            fn(p)
        return f

    if 'mod' in which:
        ks.append(('mod_kernel', k_mod, 96, 8192, dict(nvgpr=128, accum=128)))
    if 'b' in which:
        ks.append(('b_kernel', simple(PH.phase_B), 256, 163840, {}))
    if 'c' in which:
        ks.append(('c_kernel', simple(PH.phase_C), 256, 163840, {}))
    if 'd' in which:
        ks.append(('d_kernel', simple(PH.phase_D), 256, 163840, {}))
    if 'e' in which:
        ks.append(('e_kernel', simple(PH.phase_E), 256, 163840, {}))
    nempty = int(os.environ.get('EMPTY', '0'))
    head = HEADER
    for (lab, fn, g, lds, kw) in ks:
        head += f'; @launch kernel={lab} grid=({g},1,1) block=(256,1,1) lds={lds}\n'
    for i in range(nempty):
        head += f'; @launch kernel=empty_kernel grid=(256,1,1) block=(256,1,1) lds=0\n'
    out = head + '.amdgcn_target "amdgcn-amd-amdhsa--gfx950"\n'
    descs = ''
    for (lab, fn, g, lds, kw) in ks:
        t, d = kernel_text(lab, fn, **kw)
        out += t
        descs += d
    if nempty:
        t, d = kernel_text('empty_kernel', lambda p, end: None, nvgpr=8, accum=8, nsgpr=16)
        out += t
        descs += d
    return out + descs


if __name__ == '__main__':
    mode = sys.argv[1]
    dst = sys.argv[2]
    if mode == 's3':
        txt = build_s3(sys.argv[3] if len(sys.argv) > 3 else 'mod,b,c,d,e')
    else:
        raise SystemExit('mode?')
    open(dst, 'w').write(txt)
    print('wrote', dst, len(txt), 'bytes')
```
